```python
import torch

def _softmax(x, axis=-1):
    return torch.softmax(x, dim=axis)
def _gelu(x):
    return torch.nn.functional.gelu(x, approximate="tanh")
def _silu(x):
    return torch.nn.functional.silu(x)
def _sigmoid(x):
    return torch.sigmoid(x)
def _layernorm(x, axis=-1, eps=1e-5):
    m = x.mean(dim=axis, keepdim=True)
    v = x.var(dim=axis, keepdim=True, unbiased=False)
    return (x - m) / torch.sqrt(v + eps)
def _scatter_add(tgt, idx, src, axis=0):
    return tgt.clone().index_add_(axis, idx, src)
def _segment_sum(src, seg, n):
    out = torch.zeros((n,) + src.shape[1:], dtype=src.dtype)
    return out.index_add_(0, seg, src)
def _pad(x, pw):
    flat = tuple(v for pair in reversed(pw) for v in pair)
    return torch.nn.functional.pad(x, flat)

kernel_name = 'recurrent_scan__gqa_block_cached__dense_activation_gelu__decode'

def setup_inputs():

    _w = (lambda a: (lambda t: t.to(torch.bfloat16) if t.is_floating_point() else t)(torch.as_tensor(a)))
    def _A_setup():
        B, Sq, D = 8, 1, 512
        Hq, Hkv, Sk, Dh = 32, 8, 4096, 128
        assert Hq % Hkv == 0, (Hq, Hkv)
        return {
            "x": _w((lambda *s: torch.randn(*s, dtype=torch.bfloat16) * 0.05)(B, Sq, D)),
            "k_cache": _w((lambda *s: torch.randn(*s, dtype=torch.bfloat16) * 3.2)(B, Hkv, Sk, Dh)),
            "v_cache": _w((lambda *s: torch.randn(*s, dtype=torch.bfloat16) * 3.2)(B, Hkv, Sk, Dh)),
            "wq": _w((lambda *s: torch.randn(*s, dtype=torch.bfloat16) * 3.2)(D, Hq * Dh) * (D ** -0.5)),
            "wo": _w((lambda *s: torch.randn(*s, dtype=torch.bfloat16) * 3.2)(Hq * Dh, D) * ((Hq * Dh) ** -0.5)),
        }
    _A_in = _A_setup()

    def _B_setup():
        B, S, D, F = 8, 1, 512, 1792
        return {
            "x": _w((lambda *s: torch.randn(*s, dtype=torch.bfloat16) * 0.05)(B, S, D)),
            "w1": _w((lambda *s: torch.randn(*s, dtype=torch.bfloat16) * 3.2)(D, F) * (D ** -0.5)),
            "b1": _w((lambda *s: torch.randn(*s, dtype=torch.bfloat16) * 3.2)(F) * 0.01),
            "w2": _w((lambda *s: torch.randn(*s, dtype=torch.bfloat16) * 0.4)(F, D) * (F ** -0.5)),
            "b2": _w((lambda *s: torch.randn(*s, dtype=torch.bfloat16) * 0.4)(D) * 0.01),
        }
    _B_in = _B_setup()

    return {
        "A_x": _A_in["x"],
        "A_k_cache": _A_in["k_cache"],
        "A_v_cache": _A_in["v_cache"],
        "A_wq": _A_in["wq"],
        "A_wo": _A_in["wo"],
        "B_x": _B_in["x"],
        "B_w1": _B_in["w1"],
        "B_b1": _B_in["b1"],
        "B_w2": _B_in["w2"],
        "B_b2": _B_in["b2"],
    }

def reference(A_x, A_k_cache, A_v_cache, A_wq, A_wo, B_x, B_w1, B_b1, B_w2, B_b2):
    def _A_ref(x, k_cache, v_cache, wq, wo):
        B, Sq, D = x.shape
        Hq, Dh = 32, 128
        Hkv = k_cache.shape[1]
        rep = Hq // Hkv
        q = (lambda x, *d: x.permute(*d))((x @ wq).reshape(B, Sq, Hq, Dh), 0, 2, 1, 3)
        k = (lambda x, n, axis: torch.repeat_interleave(x, n, dim=axis))(k_cache, rep, axis=1)
        v = (lambda x, n, axis: torch.repeat_interleave(x, n, dim=axis))(v_cache, rep, axis=1)
        scores = torch.einsum("bhqd,bhkd->bhqk", q, k) * (Dh ** -0.5)
        p = _softmax(scores, axis=-1)
        o = torch.einsum("bhqk,bhkd->bhqd", p, v)
        return (lambda x, *d: x.permute(*d))(o, 0, 2, 1, 3).reshape(B, Sq, Hq * Dh) @ wo

    def _B_ref(x, w1, b1, w2, b2):
        h = torch.einsum("bsd,df->bsf", x, w1) + b1
        h = _gelu(h)
        return torch.einsum("bsf,fd->bsd", h, w2) + b2

    x = A_x
    xn = _layernorm(x, axis=-1)
    s = _A_ref(xn, A_k_cache, A_v_cache, A_wq, A_wo)
    g = _silu(_B_ref(xn, B_w1, B_b1, B_w2, B_b2))
    return x + s * g
```

```python
NAME = "recurrent_scan__gqa_block_cached__dense_activation_gelu__decode"
L = []
def e(s): L.append("    " + s)
def lab(s): L.append(s + ":")
def nop(n): e(f"s_nop {n}")

QP, HP, PO, PM, SP, YP = 0x0, 0x100000, 0x200000, 0x280000, 0x300000, 0x380000
SEL_LO, SEL_HI = 0x05040100, 0x07060302

def kstart(name):
    L.append(f".globl {name}\n.p2align 8\n.type {name},@function")
    lab(name)

def kdesc(name, vg, sg=96):
    return (f".amdhsa_kernel {name}\n  .amdhsa_next_free_vgpr {vg}\n  .amdhsa_next_free_sgpr {sg}\n"
            f"  .amdhsa_accum_offset {(vg+3)//4*4}\n  .amdhsa_group_segment_fixed_size 0\n"
            f"  .amdhsa_kernarg_size 104\n  .amdhsa_user_sgpr_count 2\n"
            f"  .amdhsa_user_sgpr_kernarg_segment_ptr 1\n  .amdhsa_system_sgpr_workgroup_id_x 1\n"
            f".end_amdhsa_kernel\n")

def add64(sp, imm_or_s):
    e(f"s_add_u32 s{sp}, s{sp}, {imm_or_s}")
    e(f"s_addc_u32 s{sp+1}, s{sp+1}, 0")

def unpack(lo, hi, src):
    e(f"v_lshlrev_b32 v{lo}, 16, v{src}")
    e(f"v_and_b32 v{hi}, 0xffff0000, v{src}")

def rbf(v, t):
    e(f"v_cvt_pk_bf16_f32 v{t}, v{v}, v{v}")
    e(f"v_lshlrev_b32 v{v}, 16, v{t}")

def gemm_tile(Wv, A, acc, T, sLo, sHi):
    for c in range(8):
        m = c >> 1
        sel = sLo if (c & 1) == 0 else sHi
        t = T + (c & 1) * 4
        for p in range(4):
            e(f"v_perm_b32 v{t+p}, v{Wv+(2*p+1)*4+m}, v{Wv+(2*p)*4+m}, s{sel}")
        nop(1)
        e(f"v_mfma_f32_16x16x32_bf16 v[{acc+4*c}:{acc+4*c+3}], v[{A}:{A+3}], v[{t}:{t+3}], v[{acc+4*c}:{acc+4*c+3}]")

def k1():
    n = "k1_kernel"; kstart(n)
    e("s_cmp_ge_u32 s2, 368"); e("s_cbranch_scc1 k1_end")
    e("s_load_dwordx2 s[4:5], s[0:1], 0")
    e("s_load_dwordx2 s[6:7], s[0:1], 24")
    e("s_load_dwordx2 s[8:9], s[0:1], 48")
    e("s_load_dwordx2 s[10:11], s[0:1], 96")
    e(f"s_mov_b32 s20, {SEL_LO}"); e(f"s_mov_b32 s21, {SEL_HI}")
    e("s_waitcnt lgkmcnt(0)")
    e("v_lshlrev_b32 v1, 7, v0")
    for j in range(8):
        e(f"global_load_dwordx4 v[{64+4*j}:{67+4*j}], v1, s[4:5] offset:{16*j}")
    e("s_cmp_ge_u32 s2, 256"); e("s_cbranch_scc1 k1_ffn")
    e("s_and_b32 s12, s2, 31"); e("s_lshr_b32 s13, s2, 5")
    e("s_mov_b32 s14, 8192")
    e("s_mov_b32 s15, 16384")
    e("s_mul_i32 s16, s13, 131072"); add64(10, "s16")
    e("s_branch k1_go")
    lab("k1_ffn")
    e("s_sub_u32 s16, s2, 256")
    e("s_and_b32 s13, s16, 7"); e("s_lshr_b32 s12, s16, 3")
    e("s_mov_b32 s14, 3584"); e("s_mov_b32 s15, 7168")
    e("s_mov_b32 s6, s8"); e("s_mov_b32 s7, s9")
    e("s_mul_i32 s16, s13, 57344"); e(f"s_add_u32 s16, s16, {HP}"); add64(10, "s16")
    lab("k1_go")
    e("s_lshl_b32 s16, s12, 8"); add64(6, "s16")
    e("s_lshl_b32 s16, s13, 6"); e("s_mul_i32 s16, s16, s14"); add64(6, "s16")
    e("s_lshl_b32 s16, s12, 9"); add64(10, "s16")
    e("v_lshrrev_b32 v2, 4, v0"); e("v_and_b32 v3, 15, v0")
    e("s_lshl_b32 s17, s14, 3")
    e("v_mul_lo_u32 v4, v2, s17"); e("v_lshl_add_u32 v4, v3, 4, v4")
    e("s_mul_i32 s18, s14, 24")
    for ks2 in range(2):
        for j in range(8):
            e(f"global_load_dwordx4 v[{128+32*ks2+4*j}:{131+32*ks2+4*j}], v4, s[6:7]")
            e("v_add_u32 v4, s14, v4")
        if ks2 == 0: e("v_add_u32 v4, s18, v4")
    e("v_and_b32 v5, 7, v3"); e("v_lshlrev_b32 v5, 10, v5"); e("v_lshl_add_u32 v5, v2, 4, v5")
    e("s_lshl_b32 s16, s13, 7"); e("v_add_u32 v5, s16, v5")
    e("global_load_dwordx4 v[8:11], v5, s[4:5]")
    e("global_load_dwordx4 v[12:15], v5, s[4:5] offset:64")
    e("s_waitcnt vmcnt(18)")
    for j in range(32): unpack(192+2*j, 193+2*j, 64+j)
    e("v_mov_b32 v6, 0")
    for j in range(64): e(f"v_add_f32 v6, v6, v{192+j}")
    for off in (0x041F, 0x081F, 0x101F):
        e(f"ds_swizzle_b32 v7, v6 offset:{off}"); e("s_waitcnt lgkmcnt(0)"); e("v_add_f32 v6, v6, v7")
    e("v_mul_f32 v6, 0x3b000000, v6")
    e("v_mov_b32 v16, 0")
    for j in range(64):
        e(f"v_sub_f32 v7, v{192+j}, v6"); e("v_fmac_f32 v16, v7, v7")
    for off in (0x041F, 0x081F, 0x101F):
        e(f"ds_swizzle_b32 v7, v16 offset:{off}"); e("s_waitcnt lgkmcnt(0)"); e("v_add_f32 v16, v16, v7")
    e("v_mul_f32 v16, 0x3b000000, v16")
    rbf(6, 7); rbf(16, 7)
    e("v_add_f32 v16, 0x3727c5ac, v16"); rbf(16, 7)
    e("v_sqrt_f32 v16, v16"); nop(0); rbf(16, 7)
    e("v_rcp_f32 v16, v16")
    e("v_and_b32 v7, 7, v3"); e("v_lshlrev_b32 v7, 5, v7")
    e("ds_bpermute_b32 v17, v7, v6"); e("ds_bpermute_b32 v18, v7, v16")
    e("s_waitcnt vmcnt(0) lgkmcnt(0)")
    e("v_cmp_gt_u32 vcc, 8, v3")
    for q in range(8):
        unpack(20, 21, 8+q)
        for t in (20, 21):
            e(f"v_sub_f32 v{t}, v{t}, v17"); rbf(t, 22); e(f"v_mul_f32 v{t}, v{t}, v18")
        e(f"v_cvt_pk_bf16_f32 v{8+q}, v20, v21")
        e(f"v_cndmask_b32 v{8+q}, 0, v{8+q}, vcc")
    for c in range(32): e(f"v_mov_b32 v{32+c}, 0")
    gemm_tile(128, 8, 32, 24, 20, 21)
    gemm_tile(160, 12, 32, 24, 20, 21)
    nop(7); nop(1)
    e("v_cmp_gt_u32 vcc, 32, v0"); e("s_and_saveexec_b64 s[22:23], vcc")
    e("v_lshlrev_b32 v5, 2, v2"); e("v_mul_lo_u32 v5, v5, s15"); e("v_lshl_add_u32 v5, v3, 5, v5")
    for r in range(4):
        for c in range(8): e(f"v_mov_b32 v{64+c}, v{32+4*c+r}")
        e(f"global_store_dwordx4 v5, v[64:67], s[10:11]")
        e(f"global_store_dwordx4 v5, v[68:71], s[10:11] offset:16")
        e("v_add_u32 v5, s15, v5"); nop(1)
    lab("k1_end"); e("s_endpgm")

def k2():
    n = "k2_kernel"; kstart(n)
    KA, KB, VA, VB, S, ACC, Q, T = 64, 96, 128, 160, 192, 224, 8, 24
    e("s_cmp_ge_u32 s2, 256"); e("s_cbranch_scc1 k2_end")
    e("s_load_dwordx2 s[4:5], s[0:1], 8"); e("s_load_dwordx2 s[6:7], s[0:1], 16")
    e("s_load_dwordx2 s[10:11], s[0:1], 96")
    e(f"s_mov_b32 s20, {SEL_LO}"); e(f"s_mov_b32 s21, {SEL_HI}")
    e("s_lshr_b32 s12, s2, 2"); e("s_and_b32 s13, s2, 3")
    e("v_lshrrev_b32 v1, 6, v0"); nop(0); e("v_readfirstlane_b32 s14, v1")
    e("v_and_b32 v1, 63, v0"); e("v_lshrrev_b32 v2, 4, v1"); e("v_and_b32 v3, 15, v1")
    e("s_waitcnt lgkmcnt(0)")
    e("s_lshl_b32 s15, s12, 20"); e("s_lshl_b32 s16, s13, 18"); e("s_add_u32 s15, s15, s16")
    e("s_lshl_b32 s16, s14, 15"); e("s_add_u32 s15, s15, s16")
    add64(4, "s15"); add64(6, "s15")
    e("v_lshrrev_b32 v4, 2, v3"); e("v_lshlrev_b32 v4, 3, v4"); e("v_and_b32 v5, 3, v3"); e("v_add_u32 v4, v4, v5")
    e("v_lshlrev_b32 v4, 8, v4"); e("v_lshl_add_u32 v4, v2, 4, v4")
    e("v_lshlrev_b32 v5, 11, v2"); e("v_lshl_add_u32 v5, v3, 4, v5")
    def ldk(buf):
        for h in range(2):
            for t in range(4):
                r = buf + (h*4+t)*4
                e(f"global_load_dwordx4 v[{r}:{r+3}], v4, s[4:5] offset:{h*1024+t*64}")
        add64(4, 8192)
    def ldv(buf):
        for j in range(8):
            e(f"global_load_dwordx4 v[{buf+4*j}:{buf+4*j+3}], v5, s[6:7] offset:{j*256}")
        add64(6, 8192)
    ldk(KA); ldk(KB); ldv(VA); ldv(VB)
    e("s_lshr_b32 s16, s12, 3"); e("s_and_b32 s17, s12, 7")
    e("s_lshl_b32 s16, s16, 14"); e("s_lshl_b32 s17, s17, 11"); e("s_add_u32 s16, s16, s17")
    e("v_lshlrev_b32 v6, 2, v0"); e("v_add_u32 v6, s16, v6")
    for ks in range(8):
        e(f"global_load_dword v{16+ks}, v6, s[10:11]"); e("v_add_u32 v6, 0x20000, v6")
    e("s_waitcnt vmcnt(0)")
    for ks in range(1, 8): e(f"v_add_f32 v16, v16, v{16+ks}")
    e("v_cvt_pk_bf16_f32 v16, v16, v16"); e("v_lshlrev_b32 v6, 1, v0")
    e("ds_write_b16 v6, v16"); e("s_waitcnt lgkmcnt(0)"); e("s_barrier")
    e("v_and_b32 v6, 3, v3"); e("v_lshlrev_b32 v6, 8, v6"); e("v_lshl_add_u32 v6, v2, 4, v6")
    for t in range(4): e(f"ds_read_b128 v[{Q+4*t}:{Q+4*t+3}], v6 offset:{64*t}")
    e("v_cmp_gt_u32 vcc, 4, v3"); e("s_waitcnt lgkmcnt(0)"); e("s_barrier")
    for q in range(16): e(f"v_cndmask_b32 v{Q+q}, 0, v{Q+q}, vcc")
    for c in range(32): e(f"v_mov_b32 v{ACC+c}, 0")
    def qk(buf, tile):
        for h in range(2):
            d = S + tile*8 + h*4
            for r in range(4): e(f"v_mov_b32 v{d+r}, 0")
            nop(1)
            for t in range(4):
                r = buf + (h*4+t)*4
                e(f"v_mfma_f32_16x16x32_bf16 v[{d}:{d+3}], v[{r}:{r+3}], v[{Q+4*t}:{Q+4*t+3}], v[{d}:{d+3}]")
    qk(KA, 0); ldk(KA); qk(KB, 1); ldk(KB)
    e("s_waitcnt vmcnt(8)"); qk(KA, 2); ldv(KA)
    e("s_waitcnt vmcnt(8)"); qk(KB, 3); ldv(KB)
    nop(7); nop(1)
    e("s_mov_b32 s22, 0x3db504f3")
    for p in range(16):
        a, b = S+2*p, S+2*p+1
        e(f"v_cvt_pk_bf16_f32 v6, v{a}, v{b}"); unpack(a, b, 6)
        e(f"v_mul_f32 v{a}, s22, v{a}"); e(f"v_mul_f32 v{b}, s22, v{b}")
        e(f"v_cvt_pk_bf16_f32 v6, v{a}, v{b}"); unpack(a, b, 6)
    e(f"v_max_f32 v6, v{S}, v{S+1}")
    for p in range(1, 16): e(f"v_max3_f32 v6, v6, v{S+2*p}, v{S+2*p+1}")
    e("v_xor_b32 v7, 16, v1"); e("v_lshlrev_b32 v7, 2, v7")
    e("ds_bpermute_b32 v16, v7, v6"); e("s_waitcnt lgkmcnt(0)"); e("v_max_f32 v6, v6, v16")
    e("v_xor_b32 v17, 32, v1"); e("v_lshlrev_b32 v17, 2, v17")
    e("ds_bpermute_b32 v16, v17, v6"); e("s_waitcnt lgkmcnt(0)"); e("v_max_f32 v6, v6, v16")
    e("s_mov_b32 s23, 0x3fb8aa3b"); e("v_mov_b32 v18, 0")
    for k in range(32):
        e(f"v_sub_f32 v{S+k}, v{S+k}, v6"); e(f"v_mul_f32 v{S+k}, s23, v{S+k}"); e(f"v_exp_f32 v{S+k}, v{S+k}")
    for k in range(32): e(f"v_add_f32 v18, v18, v{S+k}")
    e("ds_bpermute_b32 v16, v7, v18"); e("s_waitcnt lgkmcnt(0)"); e("v_add_f32 v18, v18, v16")
    e("ds_bpermute_b32 v16, v17, v18"); e("s_waitcnt lgkmcnt(0)"); e("v_add_f32 v18, v18, v16")
    for p in range(16): e(f"v_cvt_pk_bf16_f32 v{S+p}, v{S+2*p}, v{S+2*p+1}")
    gemm_tile(VA, S, ACC, T, 20, 21)
    gemm_tile(VB, S+4, ACC, T, 20, 21)
    e("s_waitcnt vmcnt(8)"); gemm_tile(KA, S+8, ACC, T, 20, 21)
    e("s_waitcnt vmcnt(0)"); gemm_tile(KB, S+12, ACC, T, 20, 21)
    nop(7); nop(1)
    e("s_lshl_b32 s16, s14, 11"); e("s_add_u32 s16, s16, 2048")
    e("v_lshlrev_b32 v7, 5, v3"); e("v_add_u32 v7, s16, v7")
    e("v_cmp_gt_u32 vcc, 16, v1"); e("s_and_saveexec_b64 s[24:25], vcc")
    for r in range(4):
        for c in range(8): e(f"v_mov_b32 v{64+c}, v{ACC+4*c+r}")
        e(f"ds_write_b128 v7, v[64:67] offset:{512*r}"); e(f"ds_write_b128 v7, v[68:71] offset:{512*r+16}")
        nop(1)
    e("v_cmp_gt_u32 vcc, 4, v1"); e("s_and_b64 exec, exec, vcc")
    e("s_lshl_b32 s16, s14, 5"); e("v_lshlrev_b32 v7, 3, v3"); e("v_add_u32 v7, s16, v7")
    e("v_mov_b32 v19, v18"); e("v_mov_b32 v18, v6")
    e("ds_write_b64 v7, v[18:19] offset:1024")
    e("s_mov_b64 exec, -1"); e("s_waitcnt lgkmcnt(0)"); e("s_barrier")
    e("v_lshrrev_b32 v7, 7, v0"); e("v_lshlrev_b32 v7, 3, v7")
    for w in range(8): e(f"ds_read_b64 v[{64+2*w}:{65+2*w}], v7 offset:{1024+32*w}")
    e("v_lshlrev_b32 v6, 2, v0")
    for w in range(8): e(f"ds_read_b32 v{80+w}, v6 offset:{2048+2048*w}")
    e("s_waitcnt lgkmcnt(0)")
    e("v_max_f32 v16, v64, v66")
    for w in range(2, 8): e(f"v_max_f32 v16, v16, v{64+2*w}")
    e("v_mov_b32 v17, 0"); e("v_mov_b32 v18, 0")
    for w in range(8):
        e(f"v_sub_f32 v19, v{64+2*w}, v16"); e("v_mul_f32 v19, s23, v19"); e("v_exp_f32 v19, v19"); nop(0)
        e(f"v_fmac_f32 v17, v19, v{65+2*w}"); e(f"v_fmac_f32 v18, v19, v{80+w}")
    e("s_lshl_b32 s16, s12, 4"); e("s_add_u32 s16, s16, s13")
    e("v_lshrrev_b32 v7, 7, v0"); e("v_lshlrev_b32 v7, 2, v7"); e("v_add_u32 v7, s16, v7")
    e("v_and_b32 v19, 127, v0"); e("v_lshlrev_b32 v20, 9, v7"); e("v_lshl_add_u32 v20, v19, 2, v20")
    e(f"v_add_u32 v20, {PO}, v20"); e("global_store_dword v20, v18, s[10:11]")
    e("v_cmp_eq_u32 vcc, 0, v19"); e("s_and_b64 exec, exec, vcc")
    e("v_lshlrev_b32 v20, 3, v7"); e(f"v_add_u32 v20, {PM}, v20")
    e("global_store_dwordx2 v20, v[16:17], s[10:11]")
    lab("k2_end"); e("s_endpgm")

def k3():
    n = "k3_kernel"; kstart(n)
    e("s_cmp_ge_u32 s2, 184"); e("s_cbranch_scc1 k3_end")
    e("s_load_dwordx2 s[6:7], s[0:1], 32"); e("s_load_dwordx2 s[8:9], s[0:1], 64")
    e("s_load_dwordx2 s[26:27], s[0:1], 56"); e("s_load_dwordx2 s[10:11], s[0:1], 96")
    e(f"s_mov_b32 s20, {SEL_LO}"); e(f"s_mov_b32 s21, {SEL_HI}")
    e("s_lshr_b32 s12, s2, 2"); e("s_and_b32 s13, s2, 3")
    e("v_lshrrev_b32 v1, 6, v0"); nop(0); e("v_readfirstlane_b32 s14, v1")
    e("v_and_b32 v1, 63, v0"); e("v_lshrrev_b32 v2, 4, v1"); e("v_and_b32 v3, 15, v1")
    e("v_lshrrev_b32 v6, 5, v0"); e("v_and_b32 v7, 31, v0")
    e("s_waitcnt lgkmcnt(0)")
    e("s_cmp_ge_u32 s12, 32"); e("s_cbranch_scc1 k3_ffn")
    e("s_lshl_b32 s16, s12, 17")
    e("s_branch k3_w")
    lab("k3_ffn")
    e("s_mov_b32 s6, s8"); e("s_mov_b32 s7, s9"); e("s_sub_u32 s16, s12, 32"); e("s_lshl_b32 s16, s16, 17")
    lab("k3_w")
    e("s_lshl_b32 s17, s14, 15"); e("s_add_u32 s16, s16, s17"); e("s_lshl_b32 s17, s13, 8"); e("s_add_u32 s16, s16, s17")
    add64(6, "s16")
    e("v_lshlrev_b32 v4, 13, v2"); e("v_lshl_add_u32 v4, v3, 4, v4")
    for j in range(8): e(f"global_load_dwordx4 v[{64+4*j}:{67+4*j}], v4, s[6:7] offset:{1024*(j&3)}") if j < 4 else None
    e("v_add_u32 v4, 4096, v4")
    for j in range(4, 8): e(f"global_load_dwordx4 v[{64+4*j}:{67+4*j}], v4, s[6:7] offset:{1024*(j&3)}")
    e("s_cmp_ge_u32 s12, 32"); e("s_cbranch_scc1 k3_ffn2")
    e("v_lshlrev_b32 v8, 5, v6"); e("v_add_u32 v8, s12, v8")
    e("v_lshlrev_b32 v9, 11, v8"); e("v_lshl_add_u32 v9, v7, 4, v9"); e(f"v_add_u32 v9, {PO}, v9")
    e("v_lshlrev_b32 v10, 5, v8"); e(f"v_add_u32 v10, {PM}, v10")
    for s in range(4):
        e(f"global_load_dwordx4 v[{16+4*s}:{19+4*s}], v9, s[10:11] offset:{512*s}")
        e(f"global_load_dwordx2 v[{32+2*s}:{33+2*s}], v10, s[10:11] offset:{8*s}")
    e("s_waitcnt vmcnt(0)")
    e("v_max_f32 v40, v32, v34"); e("v_max3_f32 v40, v40, v36, v38")
    e("s_mov_b32 s23, 0x3fb8aa3b"); e("v_mov_b32 v41, 0")
    for k in range(4): e(f"v_mov_b32 v{44+k}, 0")
    for s in range(4):
        e(f"v_sub_f32 v42, v{32+2*s}, v40"); e("v_mul_f32 v42, s23, v42"); e("v_exp_f32 v42, v42"); nop(0)
        e(f"v_fmac_f32 v41, v42, v{33+2*s}")
        for k in range(4): e(f"v_fmac_f32 v{44+k}, v42, v{16+4*s+k}")
    e("v_rcp_f32 v41, v41"); nop(0)
    for k in range(4): e(f"v_mul_f32 v{44+k}, v41, v{44+k}")
    e("s_branch k3_pack")
    lab("k3_ffn2")
    e("s_sub_u32 s16, s12, 32"); e("s_lshl_b32 s16, s16, 9")
    e("v_mul_u32_u24 v9, 7168, v6"); e("v_lshl_add_u32 v9, v7, 4, v9"); e("v_add_u32 v9, s16, v9"); e(f"v_add_u32 v9, {HP}, v9")
    for ks in range(8):
        e(f"global_load_dwordx4 v[{16+4*ks}:{19+4*ks}], v9, s[10:11]"); e("v_add_u32 v9, 57344, v9")
    e("s_lshr_b32 s16, s16, 1"); e("v_lshl_add_u32 v9, v7, 3, s16")
    e("global_load_dwordx2 v[48:49], v9, s[26:27]")
    e("s_waitcnt vmcnt(0)")
    unpack(50, 51, 48); unpack(52, 53, 49)
    for k in range(4):
        for ks in range(1, 8): e(f"v_add_f32 v{16+k}, v{16+k}, v{16+4*ks+k}")
        x = 44+k
        e(f"v_mov_b32 v{x}, v{16+k}"); rbf(x, 54); e(f"v_add_f32 v{x}, v{x}, v{50+k}"); rbf(x, 54)
        e(f"v_mul_f32 v54, v{x}, v{x}"); e(f"v_mul_f32 v54, v54, v{x}")
        e(f"v_fmamk_f32 v54, v54, 0x3d372713, v{x}")
        e("v_mul_f32 v54, 0xc0135761, v54")
        e("v_exp_f32 v54, v54"); nop(0); e("v_add_f32 v54, 1.0, v54"); e("v_rcp_f32 v54, v54"); nop(0)
        e(f"v_mul_f32 v{x}, v{x}, v54")
    lab("k3_pack")
    e("v_cvt_pk_bf16_f32 v44, v44, v45"); e("v_cvt_pk_bf16_f32 v45, v46, v47")
    e("v_lshlrev_b32 v9, 8, v6"); e("v_lshl_add_u32 v9, v7, 3, v9")
    e("ds_write_b64 v9, v[44:45]"); e("s_waitcnt lgkmcnt(0)"); e("s_barrier")
    e("v_and_b32 v9, 7, v3"); e("v_lshlrev_b32 v9, 8, v9"); e("v_lshl_add_u32 v9, v2, 4, v9")
    e("s_lshl_b32 s16, s14, 6"); e("v_add_u32 v9, s16, v9")
    e("ds_read_b128 v[8:11], v9"); e("v_cmp_gt_u32 vcc, 8, v3"); e("s_waitcnt vmcnt(0) lgkmcnt(0)")
    for q in range(4): e(f"v_cndmask_b32 v{8+q}, 0, v{8+q}, vcc")
    for c in range(32): e(f"v_mov_b32 v{32+c}, 0")
    gemm_tile(64, 8, 32, 24, 20, 21)
    nop(7); nop(1)
    e("v_cmp_gt_u32 vcc, 32, v1"); e("s_and_saveexec_b64 s[24:25], vcc")
    e("s_lshl_b32 s16, s14, 12"); e("s_add_u32 s16, s16, 4096")
    e("v_lshlrev_b32 v12, 11, v2"); e("v_lshl_add_u32 v12, v3, 5, v12"); e("v_add_u32 v12, s16, v12")
    for r in range(4):
        for c in range(8): e(f"v_mov_b32 v{64+c}, v{32+4*c+r}")
        e(f"ds_write_b128 v12, v[64:67] offset:{512*r}"); e(f"ds_write_b128 v12, v[68:71] offset:{512*r+16}"); nop(1)
    e("s_mov_b64 exec, -1"); e("s_waitcnt lgkmcnt(0)"); e("s_barrier")
    e("v_lshlrev_b32 v12, 4, v0")
    for w in range(4): e(f"ds_read_b128 v[{64+4*w}:{67+4*w}], v12 offset:{4096+4096*w}")
    e("s_waitcnt lgkmcnt(0)")
    for k in range(4):
        for w in range(1, 4): e(f"v_add_f32 v{64+k}, v{64+k}, v{64+4*w+k}")
    e("s_lshl_b32 s16, s12, 3"); e("v_add_u32 v12, s16, v6"); e("v_lshlrev_b32 v12, 11, v12")
    e("s_lshl_b32 s16, s13, 9"); e("v_add_u32 v12, s16, v12"); e("v_lshl_add_u32 v12, v7, 4, v12")
    e(f"v_add_u32 v12, {SP}, v12"); e("global_store_dwordx4 v12, v[64:67], s[10:11]")
    lab("k3_end"); e("s_endpgm")

def k4():
    n = "k4_kernel"; kstart(n)
    e("s_cmp_ge_u32 s2, 16"); e("s_cbranch_scc1 k4_end")
    e("s_load_dwordx2 s[4:5], s[0:1], 0"); e("s_load_dwordx2 s[6:7], s[0:1], 72")
    e("s_load_dwordx2 s[8:9], s[0:1], 80"); e("s_load_dwordx2 s[10:11], s[0:1], 96")
    e("s_lshl_b32 s3, s2, 8"); e("v_add_u32 v1, s3, v0"); e("v_lshlrev_b32 v2, 2, v1"); e(f"v_add_u32 v2, {SP}, v2")
    e("s_waitcnt lgkmcnt(0)")
    for j in range(46):
        e(f"global_load_dword v{8+j}, v2, s[10:11]"); e("v_add_u32 v2, 16384, v2")
    e("v_lshlrev_b32 v3, 1, v1"); e("global_load_ushort v4, v3, s[4:5]")
    e("v_and_b32 v5, 511, v1"); e("v_lshlrev_b32 v5, 1, v5"); e("global_load_ushort v5, v5, s[6:7]")
    e("s_waitcnt vmcnt(0)")
    for j in range(1, 32): e(f"v_add_f32 v8, v8, v{8+j}")
    for j in range(33, 46): e(f"v_add_f32 v40, v40, v{8+j}")
    rbf(8, 6); rbf(40, 6)
    e("v_lshlrev_b32 v5, 16, v5"); e("v_add_f32 v40, v40, v5"); rbf(40, 6)
    e("v_mul_f32 v6, 0xbfb8aa3b, v40"); e("v_exp_f32 v6, v6"); nop(0); e("v_add_f32 v6, 1.0, v6"); e("v_rcp_f32 v6, v6"); nop(0)
    e("v_mul_f32 v40, v40, v6"); rbf(40, 6)
    e("v_mul_f32 v8, v8, v40"); rbf(8, 6)
    e("v_lshlrev_b32 v4, 16, v4"); e("v_add_f32 v8, v8, v4"); e("v_cvt_pk_bf16_f32 v8, v8, v8")
    e("global_store_short v3, v8, s[8:9]")
    lab("k4_end"); e("s_endpgm")

hdr = open(f"cdna_kernels/{NAME}.s.ref").read().split("; Override launch")[0]
out = hdr + """; @launch kernel=k1_kernel grid=(368,1,1) block=(64,1,1) lds=0
; @launch kernel=k2_kernel grid=(256,1,1) block=(512,1,1) lds=20480
; @launch kernel=k3_kernel grid=(184,1,1) block=(256,1,1) lds=24576
; @launch kernel=k4_kernel grid=(16,1,1) block=(256,1,1) lds=0
.amdgcn_target "amdgcn-amd-amdhsa--gfx950"
.text
"""
k1(); k2(); k3(); k4()
out += "\n".join(L) + '\n.section .rodata,"a"\n.p2align 6\n'
out += kdesc("k1_kernel", 256) + kdesc("k2_kernel", 256) + kdesc("k3_kernel", 128) + kdesc("k4_kernel", 64)
open(f"cdna_kernels/{NAME}.s", "w").write(out)
```
